```python
import torch

def _softmax(x, axis=-1):
    return torch.softmax(x, dim=axis)

def _gelu(x):
    return torch.nn.functional.gelu(x, approximate='tanh')

def _silu(x):
    return torch.nn.functional.silu(x)

def _sigmoid(x):
    return torch.sigmoid(x)

def _layernorm(x, axis=-1, eps=1e-05):
    m = x.mean(dim=axis, keepdim=True)
    v = x.var(dim=axis, keepdim=True, unbiased=False)
    return (x - m) / torch.sqrt(v + eps)

def _scatter_add(tgt, idx, src, axis=0):
    return tgt.clone().index_add_(axis, idx, src)

def _segment_sum(src, seg, n):
    out = torch.zeros((n,) + src.shape[1:], dtype=src.dtype)
    return out.index_add_(0, seg, src)

def _pad(x, pw):
    flat = tuple((v for pair in reversed(pw) for v in pair))
    return torch.nn.functional.pad(x, flat)
kernel_name = 'standalone__tree_speculative_verify_tree_attention_over_candidate_token_tree__sampling'

def setup_inputs():

    _w = lambda a: (lambda t: t.to(torch.bfloat16) if t.is_floating_point() else t)(torch.as_tensor(a))
    B, Hq, Hkv, T, C, D = (16, 16, 8, 16, 4096, 256)
    tree_mask = torch.zeros((B, T, T), dtype=float)
    for b in range(B):
        parent = torch.zeros(T, dtype=torch.int64)
        for i in range(1, T):
            parent[i] = int(torch.randint(0, i, (1,)).item())
        for i in range(T):
            j = i
            tree_mask[b, i, j] = 1.0
            while j > 0:
                j = parent[j]
                tree_mask[b, i, j] = 1.0
    return {'q': _w((lambda *s: torch.randn(*s, dtype=torch.bfloat16) * 0.8)(B, Hq, T, D)), 'k_cache': _w((lambda *s: torch.randn(*s, dtype=torch.bfloat16) * 0.8)(B, Hkv, C, D)), 'v_cache': _w((lambda *s: torch.randn(*s, dtype=torch.bfloat16) * 0.05)(B, Hkv, C, D)), 'k_tree': _w((lambda *s: torch.randn(*s, dtype=torch.bfloat16) * 0.8)(B, Hkv, T, D)), 'v_tree': _w((lambda *s: torch.randn(*s, dtype=torch.bfloat16) * 0.05)(B, Hkv, T, D)), 'tree_mask': _w(tree_mask)}

def reference(q, k_cache, v_cache, k_tree, v_tree, tree_mask):
    B, Hq, T, D = q.shape
    Hkv, C = (k_cache.shape[1], k_cache.shape[2])
    rep = Hq // Hkv
    kc = (lambda x, n, axis: torch.repeat_interleave(x, n, dim=axis))(k_cache, rep, axis=1)
    vc = (lambda x, n, axis: torch.repeat_interleave(x, n, dim=axis))(v_cache, rep, axis=1)
    kt = (lambda x, n, axis: torch.repeat_interleave(x, n, dim=axis))(k_tree, rep, axis=1)
    vt = (lambda x, n, axis: torch.repeat_interleave(x, n, dim=axis))(v_tree, rep, axis=1)
    k = torch.concatenate([kc, kt], axis=2)
    v = torch.concatenate([vc, vt], axis=2)
    scale = D ** (-0.5)
    scores = torch.einsum('bhqd,bhkd->bhqk', q, k) * scale
    ctx_mask = torch.ones((B, 1, T, C), dtype=scores.dtype)
    tm = tree_mask[:, None, :, :].clone()
    full_mask = torch.concatenate([ctx_mask, tm], axis=-1)
    scores = scores + (1.0 - full_mask) * -1000000000.0
    p = _softmax(scores, axis=-1)
    return torch.einsum('bhqk,bhkd->bhqd', p, v)
```

```python
import math
import struct
import sys

KN = "standalone__tree_speculative_verify_tree_attention_over_candidate_token_tree__sampling_kernel"
HEADER = open("standalone__tree_speculative_verify_tree_attention_over_candidate_token_tree__sampling.s.ref").read().split("; Override launch geometry")[0]

K = 1024


def fbits(x):
    return "0x%08x" % struct.unpack("<I", struct.pack("<f", x))[0]


SCALE_LOG2E = (1.0 / 16.0) * math.log2(math.e)
NEG_LOG2E = -1.0e9 * math.log2(math.e)

RING = 32768
VSLOT = 16384
QBASE = 131072
TKBASE = 147456
TVBASE = 155648
LDS_BYTES = 163840
MLBASE = QBASE
FLAGADDR = QBASE + 4096

S_WAVE = 3
S_Q, S_KC, S_VC, S_KT, S_VT, S_MASK, S_OUT, S_DBG, S_WS = 4, 6, 8, 10, 12, 14, 16, 18, 20
S_PAIR, S_SPLIT = 22, 23
SRD_K, SRD_V, SRD_A, SRD_B = 24, 28, 32, 36
S_M0K, S_M0V = 40, 44
S_SC = 48
S_CNT, S_TREE, S_C, S_T0, S_T1, S_T2, S_RING, S_NEG = 64, 65, 66, 67, 68, 69, 70, 71
S_T3, S_T4 = 72, 73

V_LANE = 1
V_T = 2
V_DMA = 10
V_KA = 18
V_VA = 26
V_M, V_L, V_AL, V_MN = 42, 43, 44, 45
V_X0, V_X1 = 46, 47
V_S = 48
V_P = 64
V_MK = 72
V_TA = 76
V_O = 128
A_Q, A_K, A_V = 0, 64, 128


class Gen:
    def __init__(self):
        self.L = []

    def e(self, s):
        self.L.append("  " + s)

    def label(self, s):
        self.L.append(s + ":")

    def text(self):
        return "\n".join(self.L) + "\n"


def sr(b, n):
    return f"s[{b}:{b+n-1}]"


def vr(b, n):
    return f"v[{b}:{b+n-1}]"


def ar(b, n):
    return f"a[{b}:{b+n-1}]"


def gen(As=1024 * K, Aw=K, Au=4 * K, Ag=16 * K, At=64 * K, flags="nt", n0=16, n1=16,
        qflags="nt", stamps=0):
    g = Gen()
    e = g.e
    assert n0 + n1 == 32
    cov = []
    for s, n in ((0, n0), (1, n1)):
        for w in range(4):
            for t in range(n):
                for u in range(16):
                    cov.append(As * s + Aw * w + At * t + Au * (u & 3) + Ag * (u >> 2))
    assert sorted(cov) == list(range(0, 1 << 21, 1024)), "pattern does not tile the pair region"

    sc_val = [Au * (u & 3) + Ag * (u >> 2) - (u & 3) * 1024 for u in range(16)]
    distinct = sorted(set(v for v in sc_val if v))
    sc_reg = {v: S_SC + i for i, v in enumerate(distinct)}
    assert len(distinct) <= 16

    def soff(u):
        return "0" if sc_val[u] == 0 else f"s{sc_reg[sc_val[u]]}"

    g.L.append(HEADER.rstrip("\n"))
    g.L.append("; Override launch geometry by editing the next line (default: block=256,")
    g.L.append(f"; @launch grid=(256,1,1) block=(256,1,1) lds={LDS_BYTES}")
    g.L.append('.amdgcn_target "amdgcn-amd-amdhsa--gfx950"')
    g.L.append(".text")
    g.L.append(f".globl {KN}")
    g.L.append(".p2align 8")
    g.L.append(f".type {KN},@function")
    g.label(KN)

    e("s_cmp_ge_u32 s2, 256")
    e("s_cbranch_scc1 L_end")
    e(f"s_load_dwordx16 {sr(4,16)}, s[0:1], 0")
    e(f"s_load_dwordx2 {sr(S_WS,2)}, s[0:1], 64")
    e(f"v_lshrrev_b32 v{V_T}, 6, v0")
    e(f"v_and_b32 v{V_LANE}, 63, v0")
    e(f"v_readfirstlane_b32 s{S_WAVE}, v{V_T}")
    e(f"v_lshrrev_b32 v{V_T}, 5, v{V_LANE}")
    e(f"v_and_b32 v{V_T+1}, 31, v{V_LANE}")
    e(f"v_lshlrev_b32 v{V_T+2}, 2, v{V_T}")
    e(f"v_xor_b32 v{V_T+2}, v{V_T+1}, v{V_T+2}")
    e(f"v_lshlrev_b32 v{V_T+2}, 4, v{V_T+2}")
    e(f"v_lshl_add_u32 v{V_DMA}, v{V_T}, 9, v{V_T+2}")
    for u in range(1, 8):
        x = (8 * (u & 1) + ((u >> 1) & 3)) << 4
        e(f"v_xor_b32 v{V_DMA+u}, {x}, v{V_DMA}")
    e(f"s_and_b32 s{S_PAIR}, s2, 7")
    e(f"s_lshr_b32 s{S_T0}, s2, 4")
    e(f"s_lshl_b32 s{S_T0}, s{S_T0}, 3")
    e(f"s_or_b32 s{S_PAIR}, s{S_PAIR}, s{S_T0}")
    e(f"s_lshr_b32 s{S_SPLIT}, s2, 3")
    e(f"s_and_b32 s{S_SPLIT}, s{S_SPLIT}, 1")
    e(f"s_lshl_b32 s{S_T0}, s{S_PAIR}, 21")
    e(f"s_mul_i32 s{S_T1}, s{S_SPLIT}, {As}")
    e(f"s_add_u32 s{S_T0}, s{S_T0}, s{S_T1}")
    e(f"s_mul_i32 s{S_T2}, s{S_WAVE}, {Aw}")
    e(f"s_add_u32 s{S_T0}, s{S_T0}, s{S_T2}")
    e(f"s_add_u32 s{S_T1}, s{S_T1}, s{S_T2}")
    e(f"s_sub_u32 s{S_T1}, {1<<21}, s{S_T1}")
    e(f"s_lshl_b32 s{S_RING}, s{S_WAVE}, 15")
    for gi in range(4):
        e(f"s_add_u32 s{S_M0K+gi}, s{S_RING}, {gi*4096}")
        e(f"s_add_u32 s{S_M0V+gi}, s{S_RING}, {VSLOT + gi*4096}")
    for v in distinct:
        e(f"s_mov_b32 s{sc_reg[v]}, {v}")
    e(f"s_cmp_eq_u32 s{S_SPLIT}, 0")
    e(f"s_cselect_b32 s{S_CNT}, {n0}, {n1}")
    e(f"s_or_b32 s{S_T2}, s{S_SPLIT}, s{S_WAVE}")
    e(f"s_cmp_eq_u32 s{S_T2}, 0")
    e(f"s_cselect_b32 s{S_TREE}, 1, 0")
    e("s_waitcnt lgkmcnt(0)")
    e(f"s_add_u32 s{SRD_K}, s{S_KC}, s{S_T0}")
    e(f"s_addc_u32 s{SRD_K+1}, s{S_KC+1}, 0")
    e(f"s_mov_b32 s{SRD_K+2}, s{S_T1}")
    e(f"s_mov_b32 s{SRD_K+3}, 0x20000")
    e(f"s_add_u32 s{SRD_V}, s{S_VC}, s{S_T0}")
    e(f"s_addc_u32 s{SRD_V+1}, s{S_VC+1}, 0")
    e(f"s_mov_b32 s{SRD_V+2}, s{S_T1}")
    e(f"s_mov_b32 s{SRD_V+3}, 0x20000")

    def issue_tile(srd, m0base, fl):
        for gi in range(4):
            e(f"s_mov_b32 m0, s{m0base+gi}")
            e("s_nop 0")
            for j in range(4):
                u = 4 * gi + j
                e(f"buffer_load_dwordx4 v{V_DMA+(u&7)}, {sr(srd,4)}, {soff(u)} offen offset:{j*1024} {fl} lds")
        e(f"s_add_u32 s{srd}, s{srd}, {At}")
        e(f"s_addc_u32 s{srd+1}, s{srd+1}, 0")
        e(f"s_sub_u32 s{srd+2}, s{srd+2}, {At}")

    issue_tile(SRD_K, S_M0K, flags)

    e(f"s_cmp_eq_u32 s{S_TREE}, 0")
    e("s_cbranch_scc1 L_no_tree_loads")
    e(f"s_lshl_b32 s{S_T0}, s{S_PAIR}, 13")
    for (ptr, base) in ((S_KT, TKBASE), (S_VT, TVBASE)):
        e(f"s_add_u32 s{SRD_A}, s{ptr}, s{S_T0}")
        e(f"s_addc_u32 s{SRD_A+1}, s{ptr+1}, 0")
        e(f"s_mov_b32 s{SRD_A+2}, 8192")
        e(f"s_mov_b32 s{SRD_A+3}, 0x20000")
        for gi in range(2):
            e(f"s_mov_b32 m0, {base + gi*4096}")
            e(f"s_mov_b32 s{S_T1}, {gi*4096}")
            for j in range(4):
                u = 4 * gi + j
                e(f"buffer_load_dwordx4 v{V_DMA+u}, {sr(SRD_A,4)}, s{S_T1} offen offset:{j*1024} {qflags} lds")
    e(f"s_lshr_b32 s{S_T0}, s{S_PAIR}, 3")
    e(f"s_lshl_b32 s{S_T0}, s{S_T0}, 9")
    e(f"s_add_u32 s{SRD_A}, s{S_MASK}, s{S_T0}")
    e(f"s_addc_u32 s{SRD_A+1}, s{S_MASK+1}, 0")
    e(f"s_mov_b32 s{SRD_A+2}, 512")
    e(f"s_mov_b32 s{SRD_A+3}, 0x20000")
    e(f"v_and_b32 v{V_T}, 15, v{V_LANE}")
    e(f"v_lshlrev_b32 v{V_T}, 5, v{V_T}")
    e(f"v_lshrrev_b32 v{V_T+1}, 5, v{V_LANE}")
    e(f"v_lshl_add_u32 v{V_T}, v{V_T+1}, 3, v{V_T}")
    e(f"buffer_load_dwordx2 {vr(V_MK,2)}, v{V_T}, {sr(SRD_A,4)}, 0 offen")
    e(f"buffer_load_dwordx2 {vr(V_MK+2,2)}, v{V_T}, {sr(SRD_A,4)}, 0 offen offset:16")
    g.label("L_no_tree_loads")

    e(f"s_lshl_b32 s{S_T0}, s{S_PAIR}, 14")
    e(f"s_add_u32 s{SRD_B}, s{S_Q}, s{S_T0}")
    e(f"s_addc_u32 s{SRD_B+1}, s{S_Q+1}, 0")
    e(f"s_mov_b32 s{SRD_B+2}, 16384")
    e(f"s_mov_b32 s{SRD_B+3}, 0x20000")
    e(f"s_and_b32 s{S_T1}, s{S_WAVE}, 1")
    e(f"s_lshl_b32 s{S_T1}, s{S_T1}, 5")
    for j in range(4):
        e(f"v_xor_b32 v{V_T+j}, s{S_T1}, v{V_DMA+j}")
    e(f"s_lshl_b32 s{S_T2}, s{S_WAVE}, 12")
    e(f"s_add_u32 m0, s{S_T2}, {QBASE}")
    e("s_nop 0")
    for j in range(4):
        e(f"buffer_load_dwordx4 v{V_T+j}, {sr(SRD_B,4)}, s{S_T2} offen offset:{j*1024} {qflags} lds")

    issue_tile(SRD_V, S_M0V, flags)

    t0, t1, t2, t3 = V_T, V_T + 1, V_T + 2, V_T + 3
    e(f"v_and_b32 v{t0}, 31, v{V_LANE}")
    e(f"v_and_b32 v{t1}, 3, v{V_LANE}")
    e(f"v_lshlrev_b32 v{t1}, 2, v{t1}")
    e(f"v_bfe_u32 v{t2}, v{V_LANE}, 2, 2")
    e(f"v_or_b32 v{t1}, v{t1}, v{t2}")
    e(f"v_lshrrev_b32 v{t2}, 5, v{V_LANE}")
    e(f"v_xor_b32 v{t1}, v{t1}, v{t2}")
    e(f"v_lshlrev_b32 v{t1}, 4, v{t1}")
    e(f"v_lshl_add_u32 v{t1}, v{t0}, 9, v{t1}")
    e(f"v_add_u32 v{V_KA}, s{S_RING}, v{t1}")
    for jl in range(1, 8):
        e(f"v_xor_b32 v{V_KA+jl}, {jl<<5}, v{V_KA}")
    e(f"v_bfe_u32 v{t0}, v{V_LANE}, 4, 1")
    e(f"v_bfe_u32 v{t1}, v{V_LANE}, 1, 1")
    e(f"v_lshl_or_b32 v{t0}, v{t0}, 1, v{t1}")
    e(f"v_bfe_u32 v{t1}, v{V_LANE}, 2, 2")
    e(f"v_lshl_or_b32 v{t3}, v{t1}, 2, v{t2}")
    e(f"v_xor_b32 v{t0}, v{t0}, v{t3}")
    e(f"v_lshlrev_b32 v{t0}, 4, v{t0}")
    e(f"v_lshl_add_u32 v{t1}, v{t2}, 2, v{t1}")
    e(f"v_lshl_add_u32 v{t0}, v{t1}, 9, v{t0}")
    e(f"v_and_b32 v{t1}, 1, v{V_LANE}")
    e(f"v_lshl_add_u32 v{t0}, v{t1}, 3, v{t0}")
    e(f"s_lshl_b32 s{S_T0}, s{S_WAVE}, 7")
    e(f"v_xor_b32 v{t0}, s{S_T0}, v{t0}")
    e(f"v_add_u32 v{V_VA}, s{S_RING}, v{t0}")
    for b in range(8):
        for ee in range(2):
            if b == 0 and ee == 0:
                continue
            e(f"v_xor_b32 v{V_VA+2*b+ee}, {(b<<6)|(ee<<5)}, v{V_VA}")
    e(f"v_mov_b32 v{V_M}, 0xff800000")
    e(f"v_mov_b32 v{V_L}, 0")
    for i in range(128):
        e(f"v_mov_b32 v{V_O+i}, 0")
    e(f"s_mov_b32 s{S_C}, {fbits(SCALE_LOG2E)}")
    e(f"s_mov_b32 s{S_NEG}, {fbits(NEG_LOG2E)}")

    e(f"s_sub_u32 s{S_T0}, {QBASE}, s{S_RING}")
    for jl in range(8):
        e(f"v_add_u32 v{V_TA+jl}, s{S_T0}, v{V_KA+jl}")
    e("s_waitcnt vmcnt(16)")
    e("s_barrier")
    for j in range(16):
        e(f"ds_read_b128 {ar(A_Q+4*j,4)}, v{V_TA+(j&7)} offset:{(j>>3)*256}")
    e("s_waitcnt lgkmcnt(0)")

    def read_k(addr_base, off):
        for j in range(16):
            e(f"ds_read_b128 {ar(A_K+4*j,4)}, v{addr_base+(j&7)} offset:{off+(j>>3)*256}")

    def qk():
        for j in range(16):
            c = "0" if j == 0 else vr(V_S, 16)
            e(f"v_mfma_f32_32x32x16_bf16 {vr(V_S,16)}, {ar(A_K+4*j,4)}, {ar(A_Q+4*j,4)}, {c}")

    def read_v(addr_base, off, nsteps):
        for s in range(nsteps):
            for b in range(8):
                for ee in range(2):
                    d = A_V + (s * 8 + b) * 4 + 2 * ee
                    e(f"ds_read_b64_tr_b16 {ar(d,2)}, v{addr_base+2*b+ee} offset:{off + s*8192 + ee*4096}")

    def pv(nsteps):
        for s in range(nsteps):
            for b in range(8):
                o = V_O + 16 * b
                e(f"v_mfma_f32_32x32x16_bf16 {vr(o,16)}, {ar(A_V+(s*8+b)*4,4)}, {vr(V_P+4*s,4)}, {vr(o,16)}")

    def rowmax(n):
        e(f"v_max3_f32 v{V_X0}, v{V_S}, v{V_S+1}, v{V_S+2}")
        i = 3
        while i + 1 < n:
            e(f"v_max3_f32 v{V_X0}, v{V_X0}, v{V_S+i}, v{V_S+i+1}")
            i += 2
        if i < n:
            e(f"v_max_f32 v{V_X0}, v{V_X0}, v{V_S+i}")
        e(f"v_mov_b32 v{V_X1}, v{V_X0}")
        e("s_nop 1")
        e(f"v_permlane32_swap_b32 v{V_X0}, v{V_X1}")
        e(f"v_max_f32 v{V_X0}, v{V_X0}, v{V_X1}")

    def softmax_update(n, scaled):
        rowmax(n)
        if not scaled:
            e(f"v_mul_f32 v{V_X0}, s{S_C}, v{V_X0}")
        e(f"v_max_f32 v{V_MN}, v{V_M}, v{V_X0}")
        e(f"v_sub_f32 v{V_AL}, v{V_M}, v{V_MN}")
        e(f"v_exp_f32 v{V_AL}, v{V_AL}")
        e(f"v_mov_b32 v{V_M}, v{V_MN}")
        for i in range(n):
            if scaled:
                e(f"v_sub_f32 v{V_S+i}, v{V_S+i}, v{V_MN}")
            else:
                e(f"v_fma_f32 v{V_S+i}, v{V_S+i}, s{S_C}, -v{V_MN}")
        for i in range(n):
            e(f"v_exp_f32 v{V_S+i}, v{V_S+i}")
        e(f"v_mul_f32 v{V_L}, v{V_L}, v{V_AL}")
        e(f"v_add_f32 v{V_X0}, v{V_S}, v{V_S+1}")
        e(f"v_add_f32 v{V_X1}, v{V_S+2}, v{V_S+3}")
        for i in range(4, n, 2):
            tgt = V_X0 if (i // 2) % 2 == 0 else V_X1
            e(f"v_add_f32 v{tgt}, v{tgt}, v{V_S+i}")
            e(f"v_add_f32 v{tgt}, v{tgt}, v{V_S+i+1}")
        for i in range(0, n, 2):
            e(f"v_cvt_pk_bf16_f32 v{V_P+i//2}, v{V_S+i}, v{V_S+i+1}")
        e(f"v_add_f32 v{V_X0}, v{V_X0}, v{V_X1}")
        e(f"v_add_f32 v{V_L}, v{V_L}, v{V_X0}")
        for i in range(0, 128, 2):
            e(f"v_pk_mul_f32 {vr(V_O+i,2)}, {vr(V_O+i,2)}, {vr(V_AL,2)} op_sel_hi:[1,0]")

    g.label("L_loop")
    e("s_waitcnt vmcnt(16)")
    read_k(V_KA, 0)
    e("s_waitcnt lgkmcnt(0)")
    e(f"s_cmp_eq_u32 s{S_CNT}, 1")
    e("s_cbranch_scc1 L_skip_k")
    issue_tile(SRD_K, S_M0K, flags)
    g.label("L_skip_k")
    qk()
    e("s_nop 7")
    e("s_nop 3")
    softmax_update(16, False)
    e(f"s_cmp_eq_u32 s{S_CNT}, 1")
    e("s_cbranch_scc1 L_wait_last")
    e("s_waitcnt vmcnt(16)")
    e("s_branch L_v_ready")
    g.label("L_wait_last")
    e("s_waitcnt vmcnt(0)")
    g.label("L_v_ready")
    read_v(V_VA, VSLOT, 2)
    e("s_waitcnt lgkmcnt(0)")
    e(f"s_cmp_eq_u32 s{S_CNT}, 1")
    e("s_cbranch_scc1 L_skip_v")
    issue_tile(SRD_V, S_M0V, flags)
    g.label("L_skip_v")
    pv(2)
    e(f"s_cmp_eq_u32 s{S_TREE}, 0")
    e("s_cbranch_scc1 L_no_tree")
    e(f"s_mov_b32 s{S_TREE}, 0")
    e(f"s_sub_u32 s{S_T0}, {TKBASE}, s{S_RING}")
    for jl in range(8):
        e(f"v_add_u32 v{V_TA+jl}, s{S_T0}, v{V_KA+jl}")
    read_k(V_TA, 0)
    e("s_waitcnt lgkmcnt(0)")
    qk()
    e(f"s_sub_u32 s{S_T0}, {TVBASE}, s{S_RING}")
    for i in range(16):
        e(f"v_add_u32 v{V_TA+i}, s{S_T0}, v{V_VA+i}")
    read_v(V_TA, 0, 1)
    for i in range(8):
        w = V_MK + (i >> 1)
        if i & 1:
            e(f"v_and_b32 v{V_T}, 0xffff0000, v{w}")
        else:
            e(f"v_lshlrev_b32 v{V_T}, 16, v{w}")
        e(f"v_sub_f32 v{V_T}, 1.0, v{V_T}")
        e(f"v_mul_f32 v{V_P+i}, s{S_NEG}, v{V_T}")
    e("s_nop 7")
    e("s_nop 3")
    for i in range(8):
        e(f"v_fma_f32 v{V_S+i}, v{V_S+i}, s{S_C}, v{V_P+i}")
    softmax_update(8, True)
    e("s_waitcnt lgkmcnt(0)")
    pv(1)
    g.label("L_no_tree")
    e(f"s_sub_u32 s{S_CNT}, s{S_CNT}, 1")
    e(f"s_cmp_lg_u32 s{S_CNT}, 0")
    e("s_cbranch_scc1 L_loop")

    e(f"v_mov_b32 v{V_X0}, v{V_L}")
    e("s_nop 7")
    e("s_nop 3")
    e(f"v_permlane32_swap_b32 v{V_X0}, v{V_L}")
    e(f"v_add_f32 v{V_L}, v{V_L}, v{V_X0}")
    assert V_L == V_M + 1
    e(f"v_lshlrev_b32 v{V_T}, 3, v{V_LANE}")
    e(f"s_lshl_b32 s{S_T0}, s{S_WAVE}, 9")
    e(f"s_add_u32 s{S_T0}, s{S_T0}, {MLBASE}")
    e(f"v_add_u32 v{V_T+1}, s{S_T0}, v{V_T}")
    e(f"ds_write_b64 v{V_T+1}, {vr(V_M,2)}")
    e(f"v_lshlrev_b32 v{V_T+2}, 4, v{V_LANE}")
    e(f"v_add_u32 v{V_T+3}, s{S_RING}, v{V_T+2}")
    for b in range(2, 8):
        for i in range(4):
            e(f"ds_write_b128 v{V_T+3}, {vr(V_O+16*b+4*i,4)} offset:{b*4096+i*1024}")
    for k in range(1, 4):
        e(f"s_xor_b32 s{S_T0}, s{S_WAVE}, {k}")
        e(f"s_lshl_b32 s{S_T1}, s{S_T0}, 15")
        e(f"v_add_u32 v{V_TA+k}, s{S_T1}, v{V_T+2}")
        e(f"s_lshl_b32 s{S_T1}, s{S_T0}, 9")
        e(f"s_add_u32 s{S_T1}, s{S_T1}, {MLBASE}")
        e(f"v_add_u32 v{V_TA+4+k}, s{S_T1}, v{V_T}")
    e("s_waitcnt lgkmcnt(0)")
    e("s_barrier")
    ML = V_S
    for k in range(1, 4):
        e(f"ds_read_b64 {vr(ML+2*k,2)}, v{V_TA+4+k}")
    for k in range(1, 4):
        for j in range(2):
            for i in range(4):
                b = 2 * k + j
                e(f"ds_read_b128 {vr(V_O+16*b+4*i,4)}, v{V_TA+k} offset:{b*4096+i*1024}")
    e("s_waitcnt lgkmcnt(0)")
    F = V_P
    e(f"v_max3_f32 v{V_MN}, v{V_M}, v{ML+2}, v{ML+4}")
    e(f"v_max_f32 v{V_MN}, v{V_MN}, v{ML+6}")
    e(f"v_sub_f32 v{F}, v{V_M}, v{V_MN}")
    for k in range(1, 4):
        e(f"v_sub_f32 v{F+2*k}, v{ML+2*k}, v{V_MN}")
    for k in range(4):
        e(f"v_exp_f32 v{F+2*k}, v{F+2*k}")
    e("s_nop 0")
    e(f"v_mul_f32 v{V_L}, v{V_L}, v{F}")
    for k in range(1, 4):
        e(f"v_fma_f32 v{V_L}, v{ML+2*k+1}, v{F+2*k}, v{V_L}")
    e(f"v_mov_b32 v{V_M}, v{V_MN}")
    for i in range(0, 32, 2):
        e(f"v_pk_mul_f32 {vr(V_O+i,2)}, {vr(V_O+i,2)}, {vr(F,2)} op_sel_hi:[1,0]")
    for k in range(1, 4):
        for i in range(0, 32, 2):
            e(f"v_pk_fma_f32 {vr(V_O+i,2)}, {vr(V_O+32*k+i,2)}, {vr(F+2*k,2)}, {vr(V_O+i,2)} op_sel_hi:[1,0,1]")

    SLOT = 8704
    e(f"s_lshl_b32 s{S_T0}, s{S_PAIR}, 1")
    e(f"s_add_u32 s{S_T1}, s{S_T0}, s{S_SPLIT}")
    e(f"s_lshl_b32 s{S_T1}, s{S_T1}, 2")
    e(f"s_add_u32 s{S_T1}, s{S_T1}, s{S_WAVE}")
    e(f"s_mul_i32 s{S_T1}, s{S_T1}, {SLOT}")
    e(f"s_add_u32 s{SRD_A}, s{S_WS}, s{S_T1}")
    e(f"s_addc_u32 s{SRD_A+1}, s{S_WS+1}, 0")
    e(f"s_mov_b32 s{SRD_A+2}, {SLOT}")
    e(f"s_mov_b32 s{SRD_A+3}, 0x20000")
    e(f"s_xor_b32 s{S_T1}, s{S_SPLIT}, 1")
    e(f"s_add_u32 s{S_T1}, s{S_T0}, s{S_T1}")
    e(f"s_lshl_b32 s{S_T1}, s{S_T1}, 2")
    e(f"s_add_u32 s{S_T1}, s{S_T1}, s{S_WAVE}")
    e(f"s_mul_i32 s{S_T1}, s{S_T1}, {SLOT}")
    e(f"s_add_u32 s{SRD_B}, s{S_WS}, s{S_T1}")
    e(f"s_addc_u32 s{SRD_B+1}, s{S_WS+1}, 0")
    e(f"s_mov_b32 s{SRD_B+2}, {SLOT}")
    e(f"s_mov_b32 s{SRD_B+3}, 0x20000")
    e(f"s_mov_b32 s{S_T3}, 4096")
    e(f"s_mov_b32 s{S_T4}, 8192")
    for i in range(8):
        so = "0" if i < 4 else f"s{S_T3}"
        e(f"buffer_store_dwordx4 {vr(V_O+4*i,4)}, v{V_T+2}, {sr(SRD_A,4)}, {so} offen offset:{(i&3)*1024} sc1")
    e(f"buffer_store_dwordx2 {vr(V_M,2)}, v{V_T}, {sr(SRD_A,4)}, s{S_T4} offen sc1")
    e("s_waitcnt vmcnt(0)")
    e("s_barrier")
    e(f"s_cmp_eq_u32 s{S_WAVE}, 0")
    e("s_cbranch_scc0 L_no_atomic")
    e(f"s_and_b32 s{S_T0}, s{S_PAIR}, 1")
    e(f"s_lshl_b32 s{S_T0}, s{S_T0}, 4")
    e(f"s_lshl_b32 s{S_T0}, 1, s{S_T0}")
    e(f"s_lshr_b32 s{S_T1}, s{S_PAIR}, 1")
    e(f"s_lshl_b32 s{S_T1}, s{S_T1}, 2")
    e(f"v_mov_b32 v{V_T+4}, s{S_T0}")
    e(f"v_mov_b32 v{V_T+5}, s{S_T1}")
    e(f"v_mov_b32 v{V_T+6}, {FLAGADDR}")
    e("s_mov_b64 exec, 1")
    e(f"global_atomic_add v{V_T+4}, v{V_T+5}, v{V_T+4}, {sr(S_DBG,2)} sc0")
    e("s_waitcnt vmcnt(0)")
    e(f"ds_write_b32 v{V_T+6}, v{V_T+4}")
    e("s_waitcnt lgkmcnt(0)")
    e("s_mov_b64 exec, -1")
    g.label("L_no_atomic")
    e("s_barrier")
    e(f"v_mov_b32 v{V_T+6}, {FLAGADDR}")
    e(f"ds_read_b32 v{V_T+4}, v{V_T+6}")
    e("s_waitcnt lgkmcnt(0)")
    e(f"v_readfirstlane_b32 s{S_T0}, v{V_T+4}")
    e(f"s_and_b32 s{S_T1}, s{S_PAIR}, 1")
    e(f"s_lshl_b32 s{S_T1}, s{S_T1}, 4")
    e(f"s_lshr_b32 s{S_T0}, s{S_T0}, s{S_T1}")
    e(f"s_and_b32 s{S_T0}, s{S_T0}, 0xffff")
    e(f"s_cmp_eq_u32 s{S_T0}, 0")
    e("s_cbranch_scc1 L_end")

    O2 = V_O + 32
    for i in range(8):
        so = "0" if i < 4 else f"s{S_T3}"
        e(f"buffer_load_dwordx4 {vr(O2+4*i,4)}, v{V_T+2}, {sr(SRD_B,4)}, {so} offen offset:{(i&3)*1024} sc1")
    e(f"buffer_load_dwordx2 {vr(ML,2)}, v{V_T}, {sr(SRD_B,4)}, s{S_T4} offen sc1")
    e(f"s_lshl_b32 s{S_T0}, s{S_PAIR}, 14")
    e(f"s_add_u32 s{SRD_A}, s{S_OUT}, s{S_T0}")
    e(f"s_addc_u32 s{SRD_A+1}, s{S_OUT+1}, 0")
    e(f"s_mov_b32 s{SRD_A+2}, 16384")
    e(f"s_mov_b32 s{SRD_A+3}, 0x20000")
    e(f"v_and_b32 v{V_T+4}, 31, v{V_LANE}")
    e(f"v_lshlrev_b32 v{V_T+4}, 9, v{V_T+4}")
    e(f"v_lshrrev_b32 v{V_T+5}, 5, v{V_LANE}")
    e(f"v_lshl_add_u32 v{V_T+4}, v{V_T+5}, 4, v{V_T+4}")
    e(f"s_lshl_b32 s{S_T0}, s{S_WAVE}, 7")
    e(f"v_add_u32 v{V_T+4}, s{S_T0}, v{V_T+4}")
    e("s_waitcnt vmcnt(0)")
    e(f"v_max_f32 v{V_MN}, v{V_M}, v{ML}")
    e(f"v_sub_f32 v{F}, v{V_M}, v{V_MN}")
    e(f"v_sub_f32 v{F+2}, v{ML}, v{V_MN}")
    e(f"v_exp_f32 v{F}, v{F}")
    e(f"v_exp_f32 v{F+2}, v{F+2}")
    e("s_nop 0")
    e(f"v_mul_f32 v{V_L}, v{V_L}, v{F}")
    e(f"v_fma_f32 v{V_L}, v{ML+1}, v{F+2}, v{V_L}")
    e(f"v_rcp_f32 v{V_L}, v{V_L}")
    e("s_nop 0")
    e(f"v_mul_f32 v{F}, v{F}, v{V_L}")
    e(f"v_mul_f32 v{F+2}, v{F+2}, v{V_L}")
    for i in range(0, 32, 2):
        e(f"v_pk_mul_f32 {vr(V_O+i,2)}, {vr(V_O+i,2)}, {vr(F,2)} op_sel_hi:[1,0]")
    for i in range(0, 32, 2):
        e(f"v_pk_fma_f32 {vr(V_O+i,2)}, {vr(O2+i,2)}, {vr(F+2,2)}, {vr(V_O+i,2)} op_sel_hi:[1,0,1]")
    R = V_O + 64
    for i in range(16):
        e(f"v_cvt_pk_bf16_f32 v{R+i}, v{V_O+2*i}, v{V_O+2*i+1}")
    e("s_nop 1")
    for j in range(2):
        for k in (0, 2):
            r = R + 8 * j + 2 * k
            e(f"v_permlane32_swap_b32 v{r}, v{r+2}")
            e(f"v_permlane32_swap_b32 v{r+1}, v{r+3}")
    for j in range(2):
        for k in (0, 2):
            r = R + 8 * j + 2 * k
            e(f"buffer_store_dwordx4 {vr(r,4)}, v{V_T+4}, {sr(SRD_A,4)}, 0 offen offset:{64*j + 16*k}")
    g.label("L_end")
    e("s_endpgm")

    g.L.append('.section .rodata,"a"')
    g.L.append(".p2align 6")
    g.L.append(f".amdhsa_kernel {KN}")
    g.L.append("  .amdhsa_next_free_vgpr 512")
    g.L.append("  .amdhsa_next_free_sgpr 96")
    g.L.append("  .amdhsa_accum_offset 256")
    g.L.append("  .amdhsa_group_segment_fixed_size 0")
    g.L.append("  .amdhsa_kernarg_size 72")
    g.L.append("  .amdhsa_user_sgpr_count 2")
    g.L.append("  .amdhsa_user_sgpr_kernarg_segment_ptr 1")
    g.L.append("  .amdhsa_system_sgpr_workgroup_id_x 1")
    g.L.append("  .amdhsa_float_denorm_mode_32 3")
    g.L.append(".end_amdhsa_kernel")
    return g.text()


if __name__ == "__main__":
    out = sys.argv[1] if len(sys.argv) > 1 else "attn_v1.s"
    open(out, "w").write(gen())
    import build
    print(build.build(out))
```
